```python
import torch

def _softmax(x, axis=-1):
    return torch.softmax(x, dim=axis)
def _gelu(x):
    return torch.nn.functional.gelu(x, approximate="tanh")
def _silu(x):
    return torch.nn.functional.silu(x)
def _sigmoid(x):
    return torch.sigmoid(x)
def _layernorm(x, axis=-1, eps=1e-5):
    m = x.mean(dim=axis, keepdim=True)
    v = x.var(dim=axis, keepdim=True, unbiased=False)
    return (x - m) / torch.sqrt(v + eps)
def _scatter_add(tgt, idx, src, axis=0):
    return tgt.clone().index_add_(axis, idx, src)
def _segment_sum(src, seg, n):
    out = torch.zeros((n,) + src.shape[1:], dtype=src.dtype)
    return out.index_add_(0, seg, src)
def _pad(x, pw):
    flat = tuple(v for pair in reversed(pw) for v in pair)
    return torch.nn.functional.pad(x, flat)

kernel_name = 'interleave_layers__ssm_conv_h3__swiglu_ffn__prompt'

def setup_inputs():

    _w = (lambda a: (lambda t: t.to(torch.bfloat16) if t.is_floating_point() else t)(torch.as_tensor(a)))
    def _A_setup():
        B, S, D = 1, 2048, 512
        ks = 4
        return {
            "q": _w((lambda *s: torch.randn(*s, dtype=torch.bfloat16) * 0.05)(B, S, D)),
            "k": _w((lambda *s: torch.randn(*s, dtype=torch.bfloat16) * 0.8)(B, S, D)),
            "v": _w((lambda *s: torch.randn(*s, dtype=torch.bfloat16) * 0.8)(B, S, D)),
            "shift_k": _w((lambda *s: torch.randn(*s, dtype=torch.bfloat16) * 0.8)(D, ks) * 0.5),
            "ssm_k": _w((lambda *s: torch.randn(*s, dtype=torch.bfloat16) * 0.8)(D, S) * (1.0 / S ** 0.5)),
            "ssm_D": _w((lambda *s: torch.randn(*s, dtype=torch.bfloat16) * 0.8)(D)),
        }
    _A_in = _A_setup()

    def _B_setup():
        B, S, D, F = 1, 2048, 512, 1376
        return {
            "x": _w((lambda *s: torch.randn(*s, dtype=torch.bfloat16) * 0.05)(B, S, D)),
            "w_gate": _w((lambda *s: torch.randn(*s, dtype=torch.bfloat16) * 0.1)(D, F)),
            "w_up": _w((lambda *s: torch.randn(*s, dtype=torch.bfloat16) * 0.1)(D, F)),
            "w_down": _w((lambda *s: torch.randn(*s, dtype=torch.bfloat16) * 0.1)(F, D)),
        }
    _B_in = _B_setup()

    return {
        "A_q": _A_in["q"],
        "A_k": _A_in["k"],
        "A_v": _A_in["v"],
        "A_shift_k": _A_in["shift_k"],
        "A_ssm_k": _A_in["ssm_k"],
        "A_ssm_D": _A_in["ssm_D"],
        "B_x": _B_in["x"],
        "B_w_gate": _B_in["w_gate"],
        "B_w_up": _B_in["w_up"],
        "B_w_down": _B_in["w_down"],
    }

def reference(A_q, A_k, A_v, A_shift_k, A_ssm_k, A_ssm_D, B_x, B_w_gate, B_w_up, B_w_down):
    def _A_ref(q, k, v, shift_k, ssm_k, ssm_D):
        B, S, D = q.shape
        ks = shift_k.shape[-1]
        k_pad = _pad(k, ((0, 0), (ks - 1, 0), (0, 0)))
        k_shift = torch.zeros_like(k)
        for t in range(ks):
            k_shift = k_shift + k_pad[:, t:t + S, :] * shift_k[:, ks - 1 - t][None, None, :]
        kv = k_shift * v
        L = 2 * S
        kv_pad = _pad(kv, ((0, 0), (0, S), (0, 0)))
        kf_pad = _pad(ssm_k, ((0, 0), (0, S)))
        kv_f = (lambda x, axes=(-2,-1): torch.fft.rfft2(x.float(), dim=axes))(kv_pad[:, None, :, :], axes=(1, 2))
        kf_f = (lambda x, axes=(-2,-1): torch.fft.rfft2(x.float(), dim=axes))(kf_pad[:, None, :], axes=(1, 2))
        kf_f = (lambda x, *d: x.permute(*d))(kf_f, 1, 2, 0)
        y_f = kv_f * kf_f[None, :, :, :]
        y = (lambda x, s, axes=(-2,-1): torch.fft.irfft2(x, s=s, dim=axes).to(torch.bfloat16))(y_f, (1, L), axes=(1, 2))[:, 0, :S, :]
        y = y + kv * ssm_D[None, None, :]
        return q * y

    def _B_ref(x, w_gate, w_up, w_down):
        g = _silu(x @ w_gate)
        u = x @ w_up
        return (g * u) @ w_down

    x = A_q
    x = x + _A_ref(_layernorm(x, axis=-1), A_k, A_v, A_shift_k, A_ssm_k, A_ssm_D)
    x = x + _B_ref(_layernorm(x, axis=-1), B_w_gate, B_w_up, B_w_down)
    x = x + _A_ref(_layernorm(x, axis=-1), A_k, A_v, A_shift_k, A_ssm_k, A_ssm_D)
    x = x + _B_ref(_layernorm(x, axis=-1), B_w_gate, B_w_up, B_w_down)
    return x
```

```python
import sys
NAME = "interleave_layers__ssm_conv_h3__swiglu_ffn__prompt"
out = []
def e(s=""): out.append(s)

WS_Y  = 0x0000000
WS_WG = 0x0200000
WS_WU = 0x0400000
WS_WD = 0x0600000
WS_H  = 0x0800000
WS_X1 = 0x1000000
WS_X2 = 0x1200000
WS_X3 = 0x1400000
WS_XN = 0x1600000
WSZ = 268435456

def srd(d, plo, nbytes, off=0):
    if off:
        e(f"    s_add_u32 s{d}, s{plo}, {off}")
        e(f"    s_addc_u32 s{d+1}, s{plo+1}, 0")
    else:
        e(f"    s_mov_b32 s{d}, s{plo}")
        e(f"    s_mov_b32 s{d+1}, s{plo+1}")
    e(f"    s_mov_b32 s{d+2}, {nbytes}")
    e(f"    s_mov_b32 s{d+3}, 0x00020000")

def kstart(name):
    e(f".globl {name}")
    e(".p2align 8")
    e(f".type {name},@function")
    e(f"{name}:")

descs = []
def kdesc(name, vgpr, sgpr=96):
    acc = (vgpr + 3) // 4 * 4
    descs.append(f""".p2align 6
.amdhsa_kernel {name}
  .amdhsa_next_free_vgpr {vgpr}
  .amdhsa_next_free_sgpr {sgpr}
  .amdhsa_accum_offset {acc}
  .amdhsa_group_segment_fixed_size 0
  .amdhsa_kernarg_size 104
  .amdhsa_user_sgpr_count 2
  .amdhsa_user_sgpr_kernarg_segment_ptr 1
  .amdhsa_system_sgpr_workgroup_id_x 1
.end_amdhsa_kernel""")

KVSZ = 96 * 80
GC = 4384
GSZ = 8 * GC
LDS0 = 86016
def base_kv(c): return c * KVSZ
def base_g(c): return 2 * KVSZ + c * GSZ

def k0():
    nm = "conv_kernel"
    kstart(nm)
    e("    s_load_dwordx4 s[40:43], s[0:1], 8    ; k, v")
    e("    s_load_dwordx4 s[44:47], s[0:1], 24")
    e("    s_load_dwordx2 s[48:49], s[0:1], 40   ; ssm_D")
    e("    s_load_dwordx4 s[52:55], s[0:1], 56")
    e("    s_load_dwordx2 s[56:57], s[0:1], 72   ; w_down")
    e("    s_load_dwordx2 s[58:59], s[0:1], 96   ; ws")
    e("    v_and_b32 v1, 63, v0")
    e("    v_lshrrev_b32 v2, 6, v0")
    e("    s_waitcnt lgkmcnt(0)")
    e("    s_cmp_ge_u32 s2, 256")
    e("    s_cbranch_scc1 L_pack")
    srd(4, 40, 2097152); srd(8, 42, 2097152); srd(12, 46, 2097152); srd(16, 58, 2097152, WS_Y)
    e("    s_lshl_b32 s60, s2, 4")
    e("    s_add_u32 s44, s44, s60")
    e("    s_addc_u32 s45, s45, 0")
    e("    s_load_dwordx4 s[64:67], s[44:45], 0")
    e("    s_lshl_b32 s60, s2, 2")
    e("    s_add_u32 s48, s48, s60")
    e("    s_addc_u32 s49, s49, 0")
    e("    s_load_dword s68, s[48:49], 0")
    e("    v_lshlrev_b32 v3, 4, v0")
    for r in range(4, 8): e(f"    v_mov_b32 v{r}, 0")
    e("    v_add_u32 v8, 0x10000, v3")
    for i in range(21):
        e(f"    ds_write_b128 v3, v[4:7] offset:{i*4096}" if i < 16 else f"    ds_write_b128 v8, v[4:7] offset:{(i-16)*4096}")
    e("    s_lshl_b32 s60, s2, 2")
    e("    v_lshlrev_b32 v3, 13, v0          ; t0*1024")
    e("    v_add_u32 v3, s60, v3             ; voffB")
    e("    v_add_u32 v4, 0x1000, v3          ; voffC")
    e("    v_subrev_u32 v5, 0xc00, v3        ; voffA")
    K0r, V0r = 10, 24
    for i in range(3): e(f"    buffer_load_dword v{K0r+i}, v5, s[4:7], 0 offen offset:{i*1024}")
    for i in range(4): e(f"    buffer_load_dword v{K0r+3+i}, v3, s[4:7], 0 offen offset:{i*1024}")
    for i in range(4): e(f"    buffer_load_dword v{K0r+7+i}, v4, s[4:7], 0 offen offset:{i*1024}")
    for i in range(4): e(f"    buffer_load_dword v{V0r+i}, v3, s[8:11], 0 offen offset:{i*1024}")
    for i in range(4): e(f"    buffer_load_dword v{V0r+4+i}, v4, s[8:11], 0 offen offset:{i*1024}")
    e("    v_lshrrev_b32 v6, 1, v2")
    e("    s_lshl_b32 s61, s2, 1")
    e("    v_add_u32 v6, s61, v6")
    e("    v_lshlrev_b32 v6, 12, v6")
    e("    v_lshl_add_u32 v6, v1, 6, v6      ; d*4096 + l*64")
    D0 = 32
    for i in range(4): e(f"    buffer_load_dwordx4 v[{D0+4*i}:{D0+4*i+3}], v6, s[12:15], 0 offen offset:{16*i}")
    e("    v_subrev_u32 v7, 4, v6")
    e(f"    buffer_load_dword v{D0+16}, v7, s[12:15], 0 offen")
    e("    s_waitcnt lgkmcnt(0)")
    e("    s_lshl_b32 s70, s64, 16"); e("    s_and_b32 s71, s64, 0xffff0000")
    e("    s_lshl_b32 s72, s65, 16"); e("    s_and_b32 s73, s65, 0xffff0000")
    e("    s_lshl_b32 s74, s66, 16"); e("    s_and_b32 s75, s66, 0xffff0000")
    e("    s_lshl_b32 s76, s67, 16"); e("    s_and_b32 s77, s67, 0xffff0000")
    e("    s_lshl_b32 s78, s68, 16"); e("    s_and_b32 s79, s68, 0xffff0000")
    e("    s_mov_b32 s80, 0x05040100"); e("    s_mov_b32 s81, 0x07060302"); e("    s_mov_b32 s82, 0xffff")
    e("    s_barrier")
    e("    s_waitcnt vmcnt(5)")
    KL, KH = 52, 64
    for i in range(11):
        e(f"    v_lshlrev_b32 v{KL+i}, 16, v{K0r+i}")
        e(f"    v_and_b32 v{KH+i}, 0xffff0000, v{K0r+i}")
    KVP = 76
    for i in range(8):
        e(f"    v_mul_f32 v84, s73, v{KL+i}"); e(f"    v_mul_f32 v85, s77, v{KH+i}")
        e("    v_cvt_pk_bf16_f32 v86, v84, v85")
        e("    v_lshlrev_b32 v88, 16, v86"); e("    v_and_b32 v89, 0xffff0000, v86")
        for j, (wl, wh) in enumerate([(72, 76), (71, 75), (70, 74)]):
            e(f"    v_mul_f32 v84, s{wl}, v{KL+i+1+j}"); e(f"    v_mul_f32 v85, s{wh}, v{KH+i+1+j}")
            e("    v_cvt_pk_bf16_f32 v86, v84, v85")
            e("    v_lshlrev_b32 v84, 16, v86"); e("    v_and_b32 v85, 0xffff0000, v86")
            e("    v_add_f32 v88, v88, v84"); e("    v_add_f32 v89, v89, v85")
            e("    v_cvt_pk_bf16_f32 v86, v88, v89")
            e("    v_lshlrev_b32 v88, 16, v86"); e("    v_and_b32 v89, 0xffff0000, v86")
        e(f"    v_lshlrev_b32 v84, 16, v{V0r+i}"); e(f"    v_and_b32 v85, 0xffff0000, v{V0r+i}")
        e("    v_mul_f32 v84, v84, v88"); e("    v_mul_f32 v85, v85, v89")
        e(f"    v_cvt_pk_bf16_f32 v{KVP+i}, v84, v85")
    e("    v_lshrrev_b32 v84, 2, v0"); e("    v_add_u32 v84, 32, v84"); e("    v_mul_u32_u24 v84, 80, v84")
    e("    v_and_b32 v85, 3, v0"); e("    v_lshl_add_u32 v84, v85, 4, v84")
    for c, sel in ((0, 80), (1, 81)):
        for i in range(4):
            e(f"    v_perm_b32 v{88+i}, v{KVP+2*i+1}, v{KVP+2*i}, s{sel}")
        e(f"    ds_write_b128 v84, v[88:91] offset:{base_kv(c)}")
    e("    s_waitcnt vmcnt(0)")
    e("    v_cmp_eq_u32 vcc, 0, v1")
    e("    s_nop 1")
    e(f"    v_cndmask_b32 v{D0+16}, v{D0+16}, 0, vcc")
    e("    v_lshrrev_b32 v84, 1, v2"); e(f"    v_mul_u32_u24 v84, {GSZ}, v84")
    e("    v_and_b32 v85, 1, v2"); e(f"    v_mul_u32_u24 v85, {4*GC-8}, v85")
    e("    v_add_u32 v84, v84, v85"); e("    v_lshlrev_b32 v85, 6, v1"); e("    v_sub_u32 v84, v84, v85")
    e(f"    v_add_u32 v84, {base_g(0) - 60}, v84")
    for i in range(16): e(f"    v_alignbit_b32 v{92+i}, v{D0+i}, v{D0+i}, 16")
    for i in range(16):
        prev = D0 + i - 1 if i else D0 + 16
        e(f"    v_bfi_b32 v{108+i}, s82, v{D0+i}, v{prev}")
    for s in range(4):
        for i in range(16):
            if s % 2 == 0: off = s * GC + 2 * (2054 - s) - 4 * i + 60; r = 92 + i
            else:          off = s * GC + 2 * (2055 - s) - 4 * i + 60; r = 108 + i
            e(f"    ds_write_b32 v84, v{r} offset:{off}")
    e("    s_waitcnt lgkmcnt(0)")
    e("    s_barrier")
    e("    v_and_b32 v3, 31, v1          ; r / n")
    e("    v_lshrrev_b32 v4, 5, v1       ; hi")
    e("    v_lshrrev_b32 v5, 1, v2       ; c")
    e("    v_and_b32 v6, 1, v2           ; I")
    e("    v_sub_u32 v7, 2047, v3"); e("    v_and_b32 v8, 7, v7")
    e("    v_sub_u32 v7, v7, v8"); e("    v_lshl_add_u32 v7, v4, 3, v7"); e("    v_lshlrev_b32 v7, 1, v7")
    e(f"    v_mul_u32_u24 v8, {GC}, v8"); e("    v_add_u32 v7, v7, v8")
    e(f"    v_mul_u32_u24 v8, {GSZ}, v5"); e("    v_add_u32 v7, v7, v8")
    e(f"    v_add_u32 v7, {base_g(0) + 16 - 192}, v7")
    e("    v_lshl_add_u32 v8, v6, 5, v3"); e("    v_mul_u32_u24 v8, 80, v8"); e("    v_lshl_add_u32 v8, v4, 4, v8")
    e(f"    v_mul_u32_u24 v9, {KVSZ}, v5"); e("    v_add_u32 v8, v8, v9")
    e(f"    v_add_u32 v9, {32*80}, v8")
    e(f"    v_add_u32 v8, {32*80 - 240}, v8")
    e("    v_readfirstlane_b32 s60, v6")
    e("    s_lshl_b32 s60, s60, 3"); e("    s_add_u32 s60, s60, 8")
    for r in range(16): e(f"    v_mov_b32 v{16+r}, 0")
    e("L_cm:")
    for mi in range(4):
        for ks in range(2):
            e(f"    ds_read_b128 v[{40+8*(2*mi+ks)}:{43+8*(2*mi+ks)}], v7 offset:{64*(3-mi)+32*ks}")
            e(f"    ds_read_b128 v[{44+8*(2*mi+ks)}:{47+8*(2*mi+ks)}], v8 offset:{80*(3-mi)+32*ks}")
    for q in range(8):
        e(f"    s_waitcnt lgkmcnt({14-2*q})")
        e(f"    v_mfma_f32_32x32x16_bf16 v[16:31], v[{40+8*q}:{43+8*q}], v[{44+8*q}:{47+8*q}], v[16:31]")
    e("    v_subrev_u32 v7, 256, v7"); e("    v_subrev_u32 v8, 320, v8")
    e("    s_sub_u32 s60, s60, 1"); e("    s_cmp_lg_u32 s60, 0"); e("    s_cbranch_scc1 L_cm")
    e("    v_lshlrev_b32 v10, 3, v4"); e("    v_lshlrev_b32 v11, 4, v4"); e("    v_sub_u32 v9, v9, v11"); e("    v_add_u32 v9, v9, v10")
    for q in range(4): e(f"    ds_read_b64 v[{40+2*q}:{41+2*q}], v9 offset:{16*q}")
    e("    v_lshl_add_u32 v10, v6, 5, v3"); e("    v_lshlrev_b32 v10, 5, v10"); e("    v_lshl_add_u32 v10, v4, 2, v10")
    e("    v_lshlrev_b32 v10, 10, v10"); e("    v_lshl_add_u32 v10, v5, 1, v10"); e("    s_lshl_b32 s61, s2, 2"); e("    v_add_u32 v10, s61, v10")
    e("    v_readfirstlane_b32 s62, v5")
    e("    s_nop 3")
    e("    s_cmp_eq_u32 s62, 0"); e("    s_cselect_b32 s63, s78, s79")
    e("    s_nop 15")
    e("    s_waitcnt lgkmcnt(0)")
    for q in range(4):
        for j in range(4):
            r = 16 + 4*q + j
            src = 40 + 2*q + (j >> 1)
            if j & 1: e(f"    v_and_b32 v12, 0xffff0000, v{src}")
            else:     e(f"    v_lshlrev_b32 v12, 16, v{src}")
            e("    v_mul_f32 v12, s63, v12")
            e(f"    v_cvt_pk_bf16_f32 v13, v12, v{r}")
            e("    v_lshlrev_b32 v12, 16, v13"); e("    v_and_b32 v13, 0xffff0000, v13")
            e("    v_add_f32 v12, v12, v13")
            e("    v_cvt_pk_bf16_f32 v12, v12, v12")
            e(f"    buffer_store_short v12, v10, s[16:19], 0 offen offset:{j*1024}")
        if q < 3: e("    v_add_u32 v10, 0x2000, v10")
    e("    s_endpgm")
    e("L_pack:")
    e("    s_cmp_ge_u32 s2, 1288"); e("    s_cbranch_scc1 L_pk_end")
    e("    v_readfirstlane_b32 s60, v2")
    e("    s_sub_u32 s61, s2, 256"); e("    s_lshl_b32 s61, s61, 2"); e("    s_add_u32 s61, s61, s60     ; f")
    e("    v_and_b32 v3, 31, v1"); e("    v_lshrrev_b32 v4, 5, v1")
    e("    s_cmp_ge_u32 s61, 2752"); e("    s_cbranch_scc1 L_pk_down")
    e("    s_cmp_ge_u32 s61, 1376")
    e("    s_cselect_b32 s4, s54, s52"); e("    s_cselect_b32 s5, s55, s53"); e("    s_mov_b32 s6, 1409024"); e("    s_mov_b32 s7, 0x00020000")
    e(f"    s_mov_b32 s62, {WS_WU}"); e(f"    s_cselect_b32 s62, s62, {WS_WG}"); e("    s_cselect_b32 s63, 1376, 0"); e("    s_sub_u32 s61, s61, s63")
    e("    s_lshr_b32 s64, s61, 5      ; nt"); e("    s_and_b32 s65, s61, 31   ; s")
    e("    s_lshl_b32 s66, s65, 4"); e("    v_lshl_add_u32 v5, v4, 3, s66    ; k0 = 16s+8hi")
    e("    v_mul_u32_u24 v5, 2752, v5"); e("    s_lshl_b32 s66, s64, 5"); e("    v_add_u32 v6, s66, v3"); e("    v_lshl_add_u32 v5, v6, 1, v5")
    for j in range(8): e(f"    buffer_load_ushort v{8+j}, v5, s[4:7], 0 offen offset:{0}" if j == 0 else f"    buffer_load_ushort v{8+j}, v5, s[4:7], 0 offen" ); e("    v_add_u32 v5, 2752, v5")
    e("    s_branch L_pk_st")
    e("L_pk_down:")
    e("    s_mov_b32 s4, s56"); e("    s_mov_b32 s5, s57"); e("    s_mov_b32 s6, 1409024"); e("    s_mov_b32 s7, 0x00020000")
    e(f"    s_mov_b32 s62, {WS_WD}"); e("    s_sub_u32 s61, s61, 2752")
    e("    s_mul_hi_u32 s64, s61, 49941481   ; /86"); e("    s_mul_i32 s65, s64, 86"); e("    s_sub_u32 s65, s61, s65")
    e("    s_lshl_b32 s66, s65, 4"); e("    v_lshl_add_u32 v5, v4, 2, s66    ; k0 = 16s+4hi")
    e("    v_lshlrev_b32 v5, 10, v5"); e("    s_lshl_b32 s66, s64, 5"); e("    v_add_u32 v6, s66, v3"); e("    v_lshl_add_u32 v5, v6, 1, v5")
    for j in range(8):
        e(f"    buffer_load_ushort v{8+j}, v5, s[4:7], 0 offen")
        e("    v_add_u32 v5, 1024, v5" if j != 3 else "    v_add_u32 v5, 5120, v5")
    e("L_pk_st:")
    e("    s_add_u32 s8, s58, s62"); e("    s_addc_u32 s9, s59, 0"); e("    s_mov_b32 s10, 1409024"); e("    s_mov_b32 s11, 0x00020000")
    e("    s_lshl_b32 s61, s61, 10"); e("    v_lshlrev_b32 v5, 4, v1"); e("    v_add_u32 v5, s61, v5")
    e("    s_waitcnt vmcnt(0)")
    for j in range(4): e(f"    v_lshl_or_b32 v{16+j}, v{9+2*j}, 16, v{8+2*j}")
    e("    buffer_store_dwordx4 v[16:19], v5, s[8:11], 0 offen")
    e("L_pk_end:")
    e("    s_endpgm")
    kdesc(nm, 128)
    return nm

def ln_stats(xr, tag):
    e(f"    v_add_f32 v122, v{xr[0]}, v{xr[1]}")
    for i in range(2, 8): e(f"    v_add_f32 v122, v122, v{xr[i]}")
    red("v122");
    e("    v_mul_f32 v122, 0x3b000000, v122     ; /512")
    e(f"    v_sub_f32 v123, v{xr[0]}, v122"); e("    v_mul_f32 v124, v123, v123")
    for i in range(1, 8):
        e(f"    v_sub_f32 v123, v{xr[i]}, v122"); e("    v_fmac_f32 v124, v123, v123")
    red("v124")
    e("    v_mul_f32 v124, 0x3b000000, v124")
    e("    v_cvt_pk_bf16_f32 v123, v122, v124")
    e("    v_lshlrev_b32 v120, 16, v123"); e("    v_and_b32 v124, 0xffff0000, v123")
    e("    v_add_f32 v124, 0x3727c5ac, v124")
    e("    v_cvt_pk_bf16_f32 v124, v124, v124"); e("    v_lshlrev_b32 v124, 16, v124")
    e("    v_sqrt_f32 v124, v124"); e("    s_nop 0")
    e("    v_cvt_pk_bf16_f32 v124, v124, v124"); e("    v_lshlrev_b32 v124, 16, v124")
    e("    v_rcp_f32 v121, v124"); e("    s_nop 0")
def red(v):
    e("    s_nop 1")
    for sh in ("row_shr:1", "row_shr:2", "row_shr:4", "row_shr:8", "row_bcast:15 row_mask:0xa", "row_bcast:31 row_mask:0xc"):
        e(f"    v_add_f32_dpp {v}, {v}, {v} {sh}" + (" row_mask:0xf" if "mask" not in sh else "") + " bank_mask:0xf")
        e("    s_nop 1")
    e(f"    v_readlane_b32 s70, {v}, 63"); e("    s_nop 1"); e(f"    v_mov_b32 {v}, s70")
def ln_apply(xr, dst):
    for i in range(0, 8, 2):
        e(f"    v_sub_f32 v123, v{xr[i]}, v120"); e(f"    v_sub_f32 v124, v{xr[i+1]}, v120")
        e("    v_cvt_pk_bf16_f32 v125, v123, v124")
        e("    v_lshlrev_b32 v123, 16, v125"); e("    v_and_b32 v124, 0xffff0000, v125")
        e("    v_mul_f32 v123, v123, v121"); e("    v_mul_f32 v124, v124, v121")
        e(f"    v_cvt_pk_bf16_f32 v{dst+i//2}, v123, v124")

def kln(nm, src_ws):
    kstart(nm)
    e("    s_load_dwordx2 s[40:41], s[0:1], 0")
    e("    s_load_dwordx2 s[58:59], s[0:1], 96")
    e("    s_cmp_ge_u32 s2, 512"); e(f"    s_cbranch_scc1 L_{nm}_end")
    e("    v_and_b32 v1, 63, v0"); e("    v_lshrrev_b32 v2, 6, v0")
    e("    s_waitcnt lgkmcnt(0)")
    if src_ws is None: srd(4, 40, 2097152)
    else: srd(4, 58, 2097152, src_ws)
    srd(8, 58, 2097152, WS_Y)
    srd(12, 58, 2097152, WS_X1 if src_ws is None else WS_X3)
    srd(16, 58, 2097152, WS_XN)
    e("    s_lshl_b32 s60, s2, 2"); e("    v_add_u32 v3, s60, v2       ; row")
    e("    v_lshlrev_b32 v4, 10, v3"); e("    v_lshl_add_u32 v4, v1, 4, v4")
    e("    buffer_load_dwordx4 v[8:11], v4, s[4:7], 0 offen")
    e("    buffer_load_dwordx4 v[12:15], v4, s[8:11], 0 offen")
    e("    s_waitcnt vmcnt(0)")
    X, Y = 16, 24
    for i in range(4):
        e(f"    v_lshlrev_b32 v{X+2*i}, 16, v{8+i}"); e(f"    v_and_b32 v{X+2*i+1}, 0xffff0000, v{8+i}")
        e(f"    v_lshlrev_b32 v{Y+2*i}, 16, v{12+i}"); e(f"    v_and_b32 v{Y+2*i+1}, 0xffff0000, v{12+i}")
    xr = [X+i for i in range(8)]
    ln_stats(xr, "a"); ln_apply(xr, 32)
    for i in range(4):
        e(f"    v_lshlrev_b32 v123, 16, v{32+i}"); e(f"    v_and_b32 v124, 0xffff0000, v{32+i}")
        e(f"    v_mul_f32 v123, v123, v{Y+2*i}"); e(f"    v_mul_f32 v124, v124, v{Y+2*i+1}")
        e("    v_cvt_pk_bf16_f32 v125, v123, v124")
        e("    v_lshlrev_b32 v123, 16, v125"); e("    v_and_b32 v124, 0xffff0000, v125")
        e(f"    v_add_f32 v123, v123, v{X+2*i}"); e(f"    v_add_f32 v124, v124, v{X+2*i+1}")
        e(f"    v_cvt_pk_bf16_f32 v{36+i}, v123, v124")
        e(f"    v_lshlrev_b32 v{X+2*i}, 16, v{36+i}"); e(f"    v_and_b32 v{X+2*i+1}, 0xffff0000, v{36+i}")
    e("    buffer_store_dwordx4 v[36:39], v4, s[12:15], 0 offen")
    ln_stats(xr, "b"); ln_apply(xr, 40)
    e("    v_lshrrev_b32 v5, 5, v3"); e("    v_lshlrev_b32 v5, 15, v5")
    e("    v_lshrrev_b32 v6, 1, v1"); e("    v_lshl_add_u32 v5, v6, 10, v5")
    e("    v_and_b32 v6, 1, v1"); e("    v_lshl_add_u32 v5, v6, 9, v5")
    e("    v_and_b32 v6, 31, v3"); e("    v_lshl_add_u32 v5, v6, 4, v5")
    e("    buffer_store_dwordx4 v[40:43], v5, s[16:19], 0 offen")
    e(f"L_{nm}_end:")
    e("    s_endpgm")
    kdesc(nm, 128)
    return nm

def kg1(nm):
    kstart(nm)
    e("    s_load_dwordx2 s[58:59], s[0:1], 96")
    e("    s_cmp_ge_u32 s2, 352"); e(f"    s_cbranch_scc1 L_{nm}_end")
    e("    v_and_b32 v1, 63, v0"); e("    v_lshrrev_b32 v2, 6, v0")
    e("    s_and_b32 s60, s2, 31       ; mt"); e("    s_lshr_b32 s61, s2, 5     ; ng")
    e("    s_waitcnt lgkmcnt(0)")
    srd(4, 58, 2097152, WS_XN); srd(8, 58, 1409024, WS_WG); srd(12, 58, 1409024, WS_WU); srd(16, 58, 64*86*1024, WS_H)
    e("    s_lshl_b32 s62, s60, 16"); e("    v_lshlrev_b32 v3, 4, v0"); e("    v_add_u32 v4, s62, v3")
    for i in range(16):
        e(f"    buffer_load_dwordx4 v[{8+4*i}:{11+4*i}], v4, s[4:7], 0 offen"); e("    v_add_u32 v4, 0x1000, v4")
    for i in range(16):
        e(f"    s_waitcnt vmcnt({15-i})"); e(f"    ds_write_b128 v3, v[{8+4*i}:{11+4*i}] offset:{i*4096}")
    e("    v_readfirstlane_b32 s63, v2")
    e("    s_lshl_b32 s64, s61, 2"); e("    s_add_u32 s64, s64, s63     ; ntile")
    e("    s_waitcnt lgkmcnt(0)"); e("    s_barrier")
    e("    s_cmp_ge_u32 s64, 43"); e(f"    s_cbranch_scc1 L_{nm}_end")
    e("    s_lshl_b32 s65, s64, 15"); e("    v_lshlrev_b32 v5, 4, v1"); e("    v_add_u32 v4, s65, v5     ; W voffset")
    ACC = 64
    for r in range(64): e(f"    v_mov_b32 v{ACC+r}, 0")
    RING = 4
    def wl(s):
        sl = s % RING
        e(f"    buffer_load_dwordx4 v[{8+8*sl}:{11+8*sl}], v4, s[8:11], 0 offen offset:{(s%4)*1024}")
        e(f"    buffer_load_dwordx4 v[{12+8*sl}:{15+8*sl}], v4, s[12:15], 0 offen offset:{(s%4)*1024}")
        if s % 4 == 3: e("    v_add_u32 v4, 0x1000, v4")
    for s in range(RING): wl(s)
    for s in range(32):
        sl = s % RING
        e(f"    ds_read_b128 v[40:43], v5 offset:{s*1024}")
        e(f"    ds_read_b128 v[44:47], v5 offset:{32768+s*1024}")
        outstanding = 2 * (min(32, s + RING) - s)
        e(f"    s_waitcnt vmcnt({outstanding-2}) lgkmcnt(0)")
        e(f"    v_mfma_f32_32x32x16_bf16 v[64:79], v[{8+8*sl}:{11+8*sl}], v[40:43], v[64:79]")
        e(f"    v_mfma_f32_32x32x16_bf16 v[80:95], v[{8+8*sl}:{11+8*sl}], v[44:47], v[80:95]")
        e(f"    v_mfma_f32_32x32x16_bf16 v[96:111], v[{12+8*sl}:{15+8*sl}], v[40:43], v[96:111]")
        e(f"    v_mfma_f32_32x32x16_bf16 v[112:127], v[{12+8*sl}:{15+8*sl}], v[44:47], v[112:127]")
        if s + RING < 32: wl(s + RING)
    e("    s_nop 15")
    e("    s_lshl_b32 s65, s60, 1"); e("    s_mul_i32 s65, s65, 86"); e("    s_lshl_b32 s66, s64, 1"); e("    s_add_u32 s65, s65, s66"); e("    s_lshl_b32 s65, s65, 10")
    e("    v_add_u32 v4, s65, v5")
    e("    s_mov_b32 s66, 0xbfb8aa3b")
    for mi in range(2):
        for sp in range(2):
            for pr in range(4):
                g0 = ACC + 16*mi + 8*sp + 2*pr; u0 = g0 + 32
                e(f"    v_cvt_pk_bf16_f32 v40, v{g0}, v{g0+1}"); e(f"    v_cvt_pk_bf16_f32 v41, v{u0}, v{u0+1}")
                e("    v_lshlrev_b32 v42, 16, v40"); e("    v_and_b32 v43, 0xffff0000, v40")
                e("    v_mul_f32 v44, s66, v42"); e("    v_mul_f32 v45, s66, v43")
                e("    v_exp_f32 v44, v44"); e("    v_exp_f32 v45, v45"); e("    s_nop 0")
                e("    v_add_f32 v44, 1.0, v44"); e("    v_add_f32 v45, 1.0, v45")
                e("    v_rcp_f32 v44, v44"); e("    v_rcp_f32 v45, v45"); e("    s_nop 0")
                e("    v_mul_f32 v42, v42, v44"); e("    v_mul_f32 v43, v43, v45")
                e("    v_cvt_pk_bf16_f32 v40, v42, v43")
                e("    v_lshlrev_b32 v42, 16, v40"); e("    v_and_b32 v43, 0xffff0000, v40")
                e("    v_lshlrev_b32 v44, 16, v41"); e("    v_and_b32 v45, 0xffff0000, v41")
                e("    v_mul_f32 v42, v42, v44"); e("    v_mul_f32 v43, v43, v45")
                e(f"    v_cvt_pk_bf16_f32 v{48+pr}, v42, v43")
            e(f"    buffer_store_dwordx4 v[48:51], v4, s[16:19], 0 offen offset:{sp*1024}")
            e("    s_nop 1")
        if mi == 0: e("    v_add_u32 v4, 88064, v4")
    e(f"L_{nm}_end:")
    e("    s_endpgm")
    kdesc(nm, 128)
    return nm

def kg2(nm, res_ws, final):
    kstart(nm)
    e("    s_load_dwordx2 s[40:41], s[0:1], 80")
    e("    s_load_dwordx2 s[58:59], s[0:1], 96")
    e("    s_cmp_ge_u32 s2, 256"); e(f"    s_cbranch_scc1 L_{nm}_end")
    e("    v_and_b32 v1, 63, v0"); e("    v_lshrrev_b32 v2, 6, v0")
    e("    s_waitcnt lgkmcnt(0)")
    srd(4, 58, 1409024, WS_WD); srd(8, 58, 64*86*1024, WS_H); srd(12, 58, 2097152, res_ws)
    if final: srd(16, 40, 2097152)
    else: srd(16, 58, 2097152, WS_X2)
    e("    v_readfirstlane_b32 s63, v2")
    e("    s_and_b32 s60, s2, 31"); e("    s_lshl_b32 s60, s60, 1"); e("    s_and_b32 s64, s63, 1"); e("    s_add_u32 s60, s60, s64   ; mtile")
    e("    s_lshr_b32 s61, s2, 5"); e("    s_lshl_b32 s61, s61, 1"); e("    s_lshr_b32 s64, s63, 1"); e("    s_add_u32 s61, s61, s64   ; ntile")
    e("    v_lshlrev_b32 v5, 4, v1")
    e("    s_mul_i32 s64, s61, 88064"); e("    v_add_u32 v3, s64, v5")
    e("    s_mul_i32 s64, s60, 88064"); e("    v_add_u32 v4, s64, v5")
    for r in range(16): e(f"    v_mov_b32 v{64+r}, 0")
    RING = 6
    def ld(s):
        sl = s % RING
        e(f"    buffer_load_dwordx4 v[{8+8*sl}:{11+8*sl}], v3, s[4:7], 0 offen offset:{(s%4)*1024}")
        e(f"    buffer_load_dwordx4 v[{12+8*sl}:{15+8*sl}], v4, s[8:11], 0 offen offset:{(s%4)*1024}")
        if s % 4 == 3: e("    v_add_u32 v3, 0x1000, v3"); e("    v_add_u32 v4, 0x1000, v4")
    for s in range(RING): ld(s)
    for s in range(86):
        sl = s % RING
        outstanding = 2 * (min(86, s + RING) - s)
        e(f"    s_waitcnt vmcnt({outstanding-2})")
        e(f"    v_mfma_f32_32x32x16_bf16 v[64:79], v[{8+8*sl}:{11+8*sl}], v[{12+8*sl}:{15+8*sl}], v[64:79]")
        if s + RING < 86: ld(s + RING)
    e("    v_and_b32 v6, 31, v1"); e("    s_lshl_b32 s64, s60, 5"); e("    v_add_u32 v6, s64, v6"); e("    v_lshlrev_b32 v6, 10, v6")
    e("    v_lshrrev_b32 v7, 5, v1"); e("    v_lshl_add_u32 v6, v7, 3, v6"); e("    s_lshl_b32 s64, s61, 6"); e("    v_add_u32 v6, s64, v6")
    for q in range(4): e(f"    buffer_load_dwordx2 v[{8+2*q}:{9+2*q}], v6, s[12:15], 0 offen offset:{16*q}")
    e("    s_nop 15"); e("    s_waitcnt vmcnt(0)")
    for q in range(4):
        for h in range(2):
            a = 64 + 4*q + 2*h
            e(f"    v_cvt_pk_bf16_f32 v20, v{a}, v{a+1}")
            e("    v_lshlrev_b32 v21, 16, v20"); e("    v_and_b32 v22, 0xffff0000, v20")
            e(f"    v_lshlrev_b32 v23, 16, v{8+2*q+h}"); e(f"    v_and_b32 v24, 0xffff0000, v{8+2*q+h}")
            e("    v_add_f32 v21, v21, v23"); e("    v_add_f32 v22, v22, v24")
            e(f"    v_cvt_pk_bf16_f32 v{26+h}, v21, v22")
        e(f"    buffer_store_dwordx2 v[26:27], v6, s[16:19], 0 offen offset:{16*q}")
        e("    s_nop 1")
    e(f"L_{nm}_end:")
    e("    s_endpgm")
    kdesc(nm, 80)
    return nm

hdr = open('cdna_kernels/' + NAME + '.s.ref').read().split('\n')
hdr = [l for l in hdr if l.startswith(';') and '@launch' not in l]
body_start = len(out)
k0(); kln("ln1_kernel", None); kln("ln2_kernel", WS_X2); kg1("g1_kernel"); kg2("g2a_kernel", WS_X1, False); kg2("g2b_kernel", WS_X3, True)
L = hdr + [
 f"; @launch kernel=conv_kernel grid=(1288,1,1) block=(256,1,1) lds={LDS0}",
 "; @launch kernel=ln1_kernel grid=(512,1,1) block=(256,1,1) lds=0",
 "; @launch kernel=g1_kernel grid=(352,1,1) block=(256,1,1) lds=65536",
 "; @launch kernel=g2a_kernel grid=(256,1,1) block=(256,1,1) lds=0",
 "; @launch kernel=ln2_kernel grid=(512,1,1) block=(256,1,1) lds=0",
 "; @launch kernel=g1_kernel grid=(352,1,1) block=(256,1,1) lds=65536",
 "; @launch kernel=g2b_kernel grid=(256,1,1) block=(256,1,1) lds=0",
 '.amdgcn_target "amdgcn-amd-amdhsa--gfx950"', ".text"] + out + ['.section .rodata,"a"'] + descs
open('cdna_kernels/' + NAME + '.s', 'w').write('\n'.join(L) + '\n')
```

```python
import sys
NAME = "interleave_layers__ssm_conv_h3__swiglu_ffn__prompt"
out = []
def e(s=""): out.append(s)

WS_Y  = 0x0000000
WS_WG = 0x0200000
WS_WU = 0x0400000
WS_WD = 0x0600000
WS_H  = 0x0800000
WS_X1 = 0x1000000
WS_X2 = 0x1200000
WS_X3 = 0x1400000
WS_XN = 0x1600000
WSZ = 268435456

def srd(d, plo, nbytes, off=0):
    if off:
        e(f"    s_add_u32 s{d}, s{plo}, {off}")
        e(f"    s_addc_u32 s{d+1}, s{plo+1}, 0")
    else:
        e(f"    s_mov_b32 s{d}, s{plo}")
        e(f"    s_mov_b32 s{d+1}, s{plo+1}")
    e(f"    s_mov_b32 s{d+2}, {nbytes}")
    e(f"    s_mov_b32 s{d+3}, 0x00020000")

def kstart(name):
    e(f".globl {name}")
    e(".p2align 8")
    e(f".type {name},@function")
    e(f"{name}:")

descs = []
def kdesc(name, vgpr, sgpr=96):
    acc = (vgpr + 3) // 4 * 4
    descs.append(f""".p2align 6
.amdhsa_kernel {name}
  .amdhsa_next_free_vgpr {vgpr}
  .amdhsa_next_free_sgpr {sgpr}
  .amdhsa_accum_offset {acc}
  .amdhsa_group_segment_fixed_size 0
  .amdhsa_kernarg_size 104
  .amdhsa_user_sgpr_count 2
  .amdhsa_user_sgpr_kernarg_segment_ptr 1
  .amdhsa_system_sgpr_workgroup_id_x 1
.end_amdhsa_kernel""")

KVSZ = 96 * 80
GC = 4384
GSZ = 8 * GC
LDS0 = 86016
def base_kv(c): return c * KVSZ
def base_g(c): return 2 * KVSZ + c * GSZ

def k0():
    nm = "conv_kernel"
    kstart(nm)
    e("    s_load_dwordx4 s[40:43], s[0:1], 8    ; k, v")
    e("    s_load_dwordx4 s[44:47], s[0:1], 24")
    e("    s_load_dwordx2 s[48:49], s[0:1], 40   ; ssm_D")
    e("    s_load_dwordx4 s[52:55], s[0:1], 56")
    e("    s_load_dwordx2 s[56:57], s[0:1], 72   ; w_down")
    e("    s_load_dwordx2 s[58:59], s[0:1], 96   ; ws")
    e("    v_and_b32 v1, 63, v0")
    e("    v_lshrrev_b32 v2, 6, v0")
    e("    s_waitcnt lgkmcnt(0)")
    e("    s_cmp_ge_u32 s2, 256")
    e("    s_cbranch_scc1 L_pk_end")
    srd(4, 40, 2097152); srd(8, 42, 2097152); srd(12, 46, 2097152); srd(16, 58, 2097152, WS_Y)
    e("    s_lshl_b32 s60, s2, 4")
    e("    s_add_u32 s44, s44, s60")
    e("    s_addc_u32 s45, s45, 0")
    e("    s_load_dwordx4 s[64:67], s[44:45], 0")
    e("    s_lshl_b32 s60, s2, 2")
    e("    s_add_u32 s48, s48, s60")
    e("    s_addc_u32 s49, s49, 0")
    e("    s_load_dword s68, s[48:49], 0")
    e("    v_lshlrev_b32 v3, 4, v0")
    for r in range(4, 8): e(f"    v_mov_b32 v{r}, 0")
    e("    v_add_u32 v8, 0x10000, v3")
    for i in range(21):
        e(f"    ds_write_b128 v3, v[4:7] offset:{i*4096}" if i < 16 else f"    ds_write_b128 v8, v[4:7] offset:{(i-16)*4096}")
    e("    s_lshl_b32 s60, s2, 2")
    e("    v_lshlrev_b32 v3, 13, v0          ; t0*1024")
    e("    v_add_u32 v3, s60, v3             ; voffB")
    e("    v_add_u32 v4, 0x1000, v3          ; voffC")
    e("    v_subrev_u32 v5, 0xc00, v3        ; voffA")
    K0r, V0r = 10, 24
    for i in range(3): e(f"    buffer_load_dword v{K0r+i}, v5, s[4:7], 0 offen offset:{i*1024}")
    for i in range(4): e(f"    buffer_load_dword v{K0r+3+i}, v3, s[4:7], 0 offen offset:{i*1024}")
    for i in range(4): e(f"    buffer_load_dword v{K0r+7+i}, v4, s[4:7], 0 offen offset:{i*1024}")
    for i in range(4): e(f"    buffer_load_dword v{V0r+i}, v3, s[8:11], 0 offen offset:{i*1024}")
    for i in range(4): e(f"    buffer_load_dword v{V0r+4+i}, v4, s[8:11], 0 offen offset:{i*1024}")
    e("    v_lshrrev_b32 v6, 1, v2")
    e("    s_lshl_b32 s61, s2, 1")
    e("    v_add_u32 v6, s61, v6")
    e("    v_lshlrev_b32 v6, 12, v6")
    e("    v_lshl_add_u32 v6, v1, 6, v6      ; d*4096 + l*64")
    D0 = 32
    for i in range(4): e(f"    buffer_load_dwordx4 v[{D0+4*i}:{D0+4*i+3}], v6, s[12:15], 0 offen offset:{16*i}")
    e("    v_subrev_u32 v7, 4, v6")
    e(f"    buffer_load_dword v{D0+16}, v7, s[12:15], 0 offen")
    e("    s_waitcnt lgkmcnt(0)")
    e("    s_lshl_b32 s70, s64, 16"); e("    s_and_b32 s71, s64, 0xffff0000")
    e("    s_lshl_b32 s72, s65, 16"); e("    s_and_b32 s73, s65, 0xffff0000")
    e("    s_lshl_b32 s74, s66, 16"); e("    s_and_b32 s75, s66, 0xffff0000")
    e("    s_lshl_b32 s76, s67, 16"); e("    s_and_b32 s77, s67, 0xffff0000")
    e("    s_lshl_b32 s78, s68, 16"); e("    s_and_b32 s79, s68, 0xffff0000")
    e("    s_mov_b32 s80, 0x05040100"); e("    s_mov_b32 s81, 0x07060302"); e("    s_mov_b32 s82, 0xffff")
    e("    s_barrier")
    e("    s_waitcnt vmcnt(5)")
    KL, KH = 52, 64
    for i in range(11):
        e(f"    v_lshlrev_b32 v{KL+i}, 16, v{K0r+i}")
        e(f"    v_and_b32 v{KH+i}, 0xffff0000, v{K0r+i}")
    KVP = 76
    for i in range(8):
        e(f"    v_mul_f32 v84, s73, v{KL+i}"); e(f"    v_mul_f32 v85, s77, v{KH+i}")
        e("    v_cvt_pk_bf16_f32 v86, v84, v85")
        e("    v_lshlrev_b32 v88, 16, v86"); e("    v_and_b32 v89, 0xffff0000, v86")
        for j, (wl, wh) in enumerate([(72, 76), (71, 75), (70, 74)]):
            e(f"    v_mul_f32 v84, s{wl}, v{KL+i+1+j}"); e(f"    v_mul_f32 v85, s{wh}, v{KH+i+1+j}")
            e("    v_cvt_pk_bf16_f32 v86, v84, v85")
            e("    v_lshlrev_b32 v84, 16, v86"); e("    v_and_b32 v85, 0xffff0000, v86")
            e("    v_add_f32 v88, v88, v84"); e("    v_add_f32 v89, v89, v85")
            e("    v_cvt_pk_bf16_f32 v86, v88, v89")
            e("    v_lshlrev_b32 v88, 16, v86"); e("    v_and_b32 v89, 0xffff0000, v86")
        e(f"    v_lshlrev_b32 v84, 16, v{V0r+i}"); e(f"    v_and_b32 v85, 0xffff0000, v{V0r+i}")
        e("    v_mul_f32 v84, v84, v88"); e("    v_mul_f32 v85, v85, v89")
        e(f"    v_cvt_pk_bf16_f32 v{KVP+i}, v84, v85")
    e("    v_lshrrev_b32 v84, 2, v0"); e("    v_add_u32 v84, 32, v84"); e("    v_mul_u32_u24 v84, 80, v84")
    e("    v_and_b32 v85, 3, v0"); e("    v_lshl_add_u32 v84, v85, 4, v84")
    for c, sel in ((0, 80), (1, 81)):
        for i in range(4):
            e(f"    v_perm_b32 v{88+i}, v{KVP+2*i+1}, v{KVP+2*i}, s{sel}")
        e(f"    ds_write_b128 v84, v[88:91] offset:{base_kv(c)}")
    e("    s_waitcnt vmcnt(0)")
    e("    v_cmp_eq_u32 vcc, 0, v1")
    e("    s_nop 1")
    e(f"    v_cndmask_b32 v{D0+16}, v{D0+16}, 0, vcc")
    e("    v_lshrrev_b32 v84, 1, v2"); e(f"    v_mul_u32_u24 v84, {GSZ}, v84")
    e("    v_and_b32 v85, 1, v2"); e(f"    v_mul_u32_u24 v85, {4*GC-8}, v85")
    e("    v_add_u32 v84, v84, v85"); e("    v_lshlrev_b32 v85, 6, v1"); e("    v_sub_u32 v84, v84, v85")
    e(f"    v_add_u32 v84, {base_g(0) - 60}, v84")
    for i in range(16): e(f"    v_alignbit_b32 v{92+i}, v{D0+i}, v{D0+i}, 16")
    for i in range(16):
        prev = D0 + i - 1 if i else D0 + 16
        e(f"    v_bfi_b32 v{108+i}, s82, v{D0+i}, v{prev}")
    for s in range(4):
        for i in range(16):
            if s % 2 == 0: off = s * GC + 2 * (2054 - s) - 4 * i + 60; r = 92 + i
            else:          off = s * GC + 2 * (2055 - s) - 4 * i + 60; r = 108 + i
            e(f"    ds_write_b32 v84, v{r} offset:{off}")
    e("    s_waitcnt lgkmcnt(0)")
    e("    s_barrier")
    e("    v_and_b32 v3, 31, v1          ; r / n")
    e("    v_lshrrev_b32 v4, 5, v1       ; hi")
    e("    v_lshrrev_b32 v5, 1, v2       ; c")
    e("    v_and_b32 v6, 1, v2           ; I")
    e("    v_sub_u32 v7, 2047, v3"); e("    v_and_b32 v8, 7, v7")
    e("    v_sub_u32 v7, v7, v8"); e("    v_lshl_add_u32 v7, v4, 3, v7"); e("    v_lshlrev_b32 v7, 1, v7")
    e(f"    v_mul_u32_u24 v8, {GC}, v8"); e("    v_add_u32 v7, v7, v8")
    e(f"    v_mul_u32_u24 v8, {GSZ}, v5"); e("    v_add_u32 v7, v7, v8")
    e(f"    v_add_u32 v7, {base_g(0) + 16 - 192}, v7")
    e("    v_lshl_add_u32 v8, v6, 5, v3"); e("    v_mul_u32_u24 v8, 80, v8"); e("    v_lshl_add_u32 v8, v4, 4, v8")
    e(f"    v_mul_u32_u24 v9, {KVSZ}, v5"); e("    v_add_u32 v8, v8, v9")
    e(f"    v_add_u32 v9, {32*80}, v8")
    e(f"    v_add_u32 v8, {32*80 - 240}, v8")
    e("    v_readfirstlane_b32 s60, v6")
    e("    s_lshl_b32 s60, s60, 3"); e("    s_add_u32 s60, s60, 8")
    for r in range(16): e(f"    v_mov_b32 v{16+r}, 0")
    e("L_cm:")
    for mi in range(4):
        for ks in range(2):
            e(f"    ds_read_b128 v[{40+8*(2*mi+ks)}:{43+8*(2*mi+ks)}], v7 offset:{64*(3-mi)+32*ks}")
            e(f"    ds_read_b128 v[{44+8*(2*mi+ks)}:{47+8*(2*mi+ks)}], v8 offset:{80*(3-mi)+32*ks}")
    for q in range(8):
        e(f"    s_waitcnt lgkmcnt({14-2*q})")
        e(f"    v_mfma_f32_32x32x16_bf16 v[16:31], v[{40+8*q}:{43+8*q}], v[{44+8*q}:{47+8*q}], v[16:31]")
    e("    v_subrev_u32 v7, 256, v7"); e("    v_subrev_u32 v8, 320, v8")
    e("    s_sub_u32 s60, s60, 1"); e("    s_cmp_lg_u32 s60, 0"); e("    s_cbranch_scc1 L_cm")
    e("    v_lshlrev_b32 v10, 3, v4"); e("    v_lshlrev_b32 v11, 4, v4"); e("    v_sub_u32 v9, v9, v11"); e("    v_add_u32 v9, v9, v10")
    for q in range(4): e(f"    ds_read_b64 v[{40+2*q}:{41+2*q}], v9 offset:{16*q}")
    e("    v_lshl_add_u32 v10, v6, 5, v3"); e("    v_lshlrev_b32 v10, 5, v10"); e("    v_lshl_add_u32 v10, v4, 2, v10"); e("    v_lshlrev_b32 v10, 1, v10")
    e("    s_lshl_b32 s61, s2, 1"); e("    v_add_u32 v11, s61, v5"); e("    v_lshl_add_u32 v10, v11, 12, v10")
    e("    v_readfirstlane_b32 s62, v5")
    e("    s_nop 3")
    e("    s_cmp_eq_u32 s62, 0"); e("    s_cselect_b32 s63, s78, s79")
    e("    s_nop 15")
    e("    s_waitcnt lgkmcnt(0)")
    for q in range(4):
        for j in range(4):
            r = 16 + 4*q + j
            src = 40 + 2*q + (j >> 1)
            if j & 1: e(f"    v_and_b32 v12, 0xffff0000, v{src}")
            else:     e(f"    v_lshlrev_b32 v12, 16, v{src}")
            e("    v_mul_f32 v12, s63, v12")
            e(f"    v_cvt_pk_bf16_f32 v13, v12, v{r}")
            e("    v_lshlrev_b32 v12, 16, v13"); e("    v_and_b32 v13, 0xffff0000, v13")
            e("    v_add_f32 v12, v12, v13")
            e(f"    v_cvt_pk_bf16_f32 v{32+j}, v12, v12")
        e("    v_perm_b32 v36, v33, v32, s80"); e("    v_perm_b32 v37, v35, v34, s80")
        e(f"    buffer_store_dwordx2 v[36:37], v10, s[16:19], 0 offen offset:{16*q}")
        e("    s_nop 1")
    e("    s_endpgm")
    e("L_pack:")
    e("    s_cmp_ge_u32 s2, 1288"); e("    s_cbranch_scc1 L_pk_end")
    e("    s_load_dwordx4 s[52:55], s[0:1], 56"); e("    s_load_dwordx2 s[56:57], s[0:1], 72"); e("    s_load_dwordx2 s[58:59], s[0:1], 96")
    e("    v_and_b32 v1, 63, v0"); e("    v_lshrrev_b32 v2, 6, v0"); e("    s_waitcnt lgkmcnt(0)")
    e("    v_readfirstlane_b32 s60, v2")
    e("    s_sub_u32 s61, s2, 256"); e("    s_lshl_b32 s61, s61, 2"); e("    s_add_u32 s61, s61, s60     ; f")
    e("    v_and_b32 v3, 31, v1"); e("    v_lshrrev_b32 v4, 5, v1")
    e("    s_cmp_ge_u32 s61, 2752"); e("    s_cbranch_scc1 L_pk_down")
    e("    s_cmp_ge_u32 s61, 1376")
    e("    s_cselect_b32 s4, s54, s52"); e("    s_cselect_b32 s5, s55, s53"); e("    s_mov_b32 s6, 1409024"); e("    s_mov_b32 s7, 0x00020000")
    e(f"    s_mov_b32 s62, {WS_WU}"); e(f"    s_cselect_b32 s62, s62, {WS_WG}"); e("    s_cselect_b32 s63, 1376, 0"); e("    s_sub_u32 s61, s61, s63")
    e("    s_lshr_b32 s64, s61, 5      ; nt"); e("    s_and_b32 s65, s61, 31   ; s")
    e("    s_lshl_b32 s66, s65, 4"); e("    v_lshl_add_u32 v5, v4, 3, s66    ; k0 = 16s+8hi")
    e("    v_mul_u32_u24 v5, 2752, v5"); e("    s_lshl_b32 s66, s64, 5"); e("    v_add_u32 v6, s66, v3"); e("    v_lshl_add_u32 v5, v6, 1, v5")
    for j in range(8): e(f"    buffer_load_ushort v{8+j}, v5, s[4:7], 0 offen offset:{0}" if j == 0 else f"    buffer_load_ushort v{8+j}, v5, s[4:7], 0 offen" ); e("    v_add_u32 v5, 2752, v5")
    e("    s_branch L_pk_st")
    e("L_pk_down:")
    e("    s_mov_b32 s4, s56"); e("    s_mov_b32 s5, s57"); e("    s_mov_b32 s6, 1409024"); e("    s_mov_b32 s7, 0x00020000")
    e(f"    s_mov_b32 s62, {WS_WD}"); e("    s_sub_u32 s61, s61, 2752")
    e("    s_mul_hi_u32 s64, s61, 49941481   ; /86"); e("    s_mul_i32 s65, s64, 86"); e("    s_sub_u32 s65, s61, s65")
    e("    s_lshl_b32 s66, s65, 4"); e("    v_lshl_add_u32 v5, v4, 2, s66    ; k0 = 16s+4hi")
    e("    v_lshlrev_b32 v5, 10, v5"); e("    s_lshl_b32 s66, s64, 5"); e("    v_add_u32 v6, s66, v3"); e("    v_lshl_add_u32 v5, v6, 1, v5")
    for j in range(8):
        e(f"    buffer_load_ushort v{8+j}, v5, s[4:7], 0 offen")
        e("    v_add_u32 v5, 1024, v5" if j != 3 else "    v_add_u32 v5, 5120, v5")
    e("L_pk_st:")
    e("    s_add_u32 s8, s58, s62"); e("    s_addc_u32 s9, s59, 0"); e("    s_mov_b32 s10, 1409024"); e("    s_mov_b32 s11, 0x00020000")
    e("    s_lshl_b32 s61, s61, 10"); e("    v_lshlrev_b32 v5, 4, v1"); e("    v_add_u32 v5, s61, v5")
    e("    s_waitcnt vmcnt(0)")
    for j in range(4): e(f"    v_lshl_or_b32 v{16+j}, v{9+2*j}, 16, v{8+2*j}")
    e("    buffer_store_dwordx4 v[16:19], v5, s[8:11], 0 offen")
    e("L_pk_end:")
    e("    s_endpgm")
    kdesc(nm, 128)
    return nm

def ln_stats(xr, tag):
    e(f"    v_add_f32 v122, v{xr[0]}, v{xr[1]}")
    for i in range(2, 8): e(f"    v_add_f32 v122, v122, v{xr[i]}")
    red("v122");
    e("    v_mul_f32 v122, 0x3b000000, v122     ; /512")
    e(f"    v_sub_f32 v123, v{xr[0]}, v122"); e("    v_mul_f32 v124, v123, v123")
    for i in range(1, 8):
        e(f"    v_sub_f32 v123, v{xr[i]}, v122"); e("    v_fmac_f32 v124, v123, v123")
    red("v124")
    e("    v_mul_f32 v124, 0x3b000000, v124")
    e("    v_cvt_pk_bf16_f32 v123, v122, v124")
    e("    v_lshlrev_b32 v120, 16, v123"); e("    v_and_b32 v124, 0xffff0000, v123")
    e("    v_add_f32 v124, 0x3727c5ac, v124")
    e("    v_cvt_pk_bf16_f32 v124, v124, v124"); e("    v_lshlrev_b32 v124, 16, v124")
    e("    v_sqrt_f32 v124, v124"); e("    s_nop 0")
    e("    v_cvt_pk_bf16_f32 v124, v124, v124"); e("    v_lshlrev_b32 v124, 16, v124")
    e("    v_rcp_f32 v121, v124"); e("    s_nop 0")
def red(v):
    e("    s_nop 1")
    for sh in ("row_shr:1", "row_shr:2", "row_shr:4", "row_shr:8", "row_bcast:15 row_mask:0xa", "row_bcast:31 row_mask:0xc"):
        e(f"    v_add_f32_dpp {v}, {v}, {v} {sh}" + (" row_mask:0xf" if "mask" not in sh else "") + " bank_mask:0xf")
        e("    s_nop 1")
    e(f"    v_readlane_b32 s70, {v}, 63"); e("    s_nop 1"); e(f"    v_mov_b32 {v}, s70")
def ln_apply(xr, dst):
    for i in range(0, 8, 2):
        e(f"    v_sub_f32 v123, v{xr[i]}, v120"); e(f"    v_sub_f32 v124, v{xr[i+1]}, v120")
        e("    v_cvt_pk_bf16_f32 v125, v123, v124")
        e("    v_lshlrev_b32 v123, 16, v125"); e("    v_and_b32 v124, 0xffff0000, v125")
        e("    v_mul_f32 v123, v123, v121"); e("    v_mul_f32 v124, v124, v121")
        e(f"    v_cvt_pk_bf16_f32 v{dst+i//2}, v123, v124")

def kln(nm, src_ws):
    kstart(nm)
    e("    s_load_dwordx2 s[40:41], s[0:1], 0")
    e("    s_load_dwordx2 s[58:59], s[0:1], 96")
    e("    s_cmp_ge_u32 s2, 256"); e(f"    s_cbranch_scc1 L_pack" if src_ws is None else f"    s_cbranch_scc1 L_{nm}_end")
    e("    v_and_b32 v1, 63, v0"); e("    v_lshrrev_b32 v2, 6, v0")
    e("    s_waitcnt lgkmcnt(0)")
    if src_ws is None: srd(4, 40, 2097152)
    else: srd(4, 58, 2097152, src_ws)
    srd(8, 58, 2097152, WS_Y)
    srd(12, 58, 2097152, WS_X1 if src_ws is None else WS_X3)
    srd(16, 58, 2097152, WS_XN)
    e("    s_lshl_b32 s60, s2, 4"); e("    v_lshlrev_b32 v3, 12, v0"); e("    v_add_u32 v3, s60, v3")
    e("    buffer_load_dwordx4 v[8:11], v3, s[8:11], 0 offen"); e("    v_add_u32 v3, 0x100000, v3")
    e("    buffer_load_dwordx4 v[12:15], v3, s[8:11], 0 offen")
    e("    v_lshlrev_b32 v5, 1, v0")
    for hh in range(2):
        e(f"    s_waitcnt vmcnt({1-hh})")
        for i in range(4):
            e(f"    ds_write_b16 v5, v{8+4*hh+i} offset:{(2*i)*1024+512*hh}")
            e(f"    ds_write_b16_d16_hi v5, v{8+4*hh+i} offset:{(2*i+1)*1024+512*hh}")
    e("    s_waitcnt lgkmcnt(0)"); e("    s_barrier")
    for rr in range(2):
        e("    s_lshl_b32 s60, s2, 3"); e(f"    v_lshl_add_u32 v3, v2, 1, s60"); e(f"    v_add_u32 v3, {rr}, v3")
        e("    v_and_b32 v6, 7, v3"); e("    v_lshlrev_b32 v6, 10, v6"); e("    v_lshl_add_u32 v6, v1, 4, v6")
        e("    ds_read_b128 v[12:15], v6")
        e("    v_lshlrev_b32 v4, 10, v3"); e("    v_lshl_add_u32 v4, v1, 4, v4")
        e("    buffer_load_dwordx4 v[8:11], v4, s[4:7], 0 offen")
        e("    s_waitcnt vmcnt(0) lgkmcnt(0)")
        X, Y = 16, 24
        for i in range(4):
            e(f"    v_lshlrev_b32 v{X+2*i}, 16, v{8+i}"); e(f"    v_and_b32 v{X+2*i+1}, 0xffff0000, v{8+i}")
            e(f"    v_lshlrev_b32 v{Y+2*i}, 16, v{12+i}"); e(f"    v_and_b32 v{Y+2*i+1}, 0xffff0000, v{12+i}")
        xr = [X+i for i in range(8)]
        ln_stats(xr, "a"); ln_apply(xr, 32)
        for i in range(4):
            e(f"    v_lshlrev_b32 v123, 16, v{32+i}"); e(f"    v_and_b32 v124, 0xffff0000, v{32+i}")
            e(f"    v_mul_f32 v123, v123, v{Y+2*i}"); e(f"    v_mul_f32 v124, v124, v{Y+2*i+1}")
            e("    v_cvt_pk_bf16_f32 v125, v123, v124")
            e("    v_lshlrev_b32 v123, 16, v125"); e("    v_and_b32 v124, 0xffff0000, v125")
            e(f"    v_add_f32 v123, v123, v{X+2*i}"); e(f"    v_add_f32 v124, v124, v{X+2*i+1}")
            e(f"    v_cvt_pk_bf16_f32 v{36+i}, v123, v124")
            e(f"    v_lshlrev_b32 v{X+2*i}, 16, v{36+i}"); e(f"    v_and_b32 v{X+2*i+1}, 0xffff0000, v{36+i}")
        e("    buffer_store_dwordx4 v[36:39], v4, s[12:15], 0 offen")
        ln_stats(xr, "b"); ln_apply(xr, 40)
        e("    v_lshrrev_b32 v5, 5, v3"); e("    v_lshlrev_b32 v5, 15, v5")
        e("    v_lshrrev_b32 v6, 1, v1"); e("    v_lshl_add_u32 v5, v6, 10, v5")
        e("    v_and_b32 v6, 1, v1"); e("    v_lshl_add_u32 v5, v6, 9, v5")
        e("    v_and_b32 v6, 31, v3"); e("    v_lshl_add_u32 v5, v6, 4, v5")
        e("    buffer_store_dwordx4 v[40:43], v5, s[16:19], 0 offen")
    e(f"L_{nm}_end:")
    e("    s_endpgm")
    kdesc(nm, 128)
    return nm

def kg1(nm):
    kstart(nm)
    e("    s_load_dwordx2 s[58:59], s[0:1], 96")
    e("    s_cmp_ge_u32 s2, 352"); e(f"    s_cbranch_scc1 L_{nm}_end")
    e("    v_and_b32 v1, 63, v0"); e("    v_lshrrev_b32 v2, 6, v0")
    e("    s_and_b32 s60, s2, 31       ; mt"); e("    s_lshr_b32 s61, s2, 5     ; ng")
    e("    s_waitcnt lgkmcnt(0)")
    srd(4, 58, 2097152, WS_XN); srd(8, 58, 1409024, WS_WG); srd(12, 58, 1409024, WS_WU); srd(16, 58, 64*86*1024, WS_H)
    e("    s_lshl_b32 s62, s60, 16"); e("    v_lshlrev_b32 v3, 4, v0"); e("    v_add_u32 v4, s62, v3")
    for i in range(16):
        e(f"    buffer_load_dwordx4 v[{8+4*i}:{11+4*i}], v4, s[4:7], 0 offen"); e("    v_add_u32 v4, 0x1000, v4")
    for i in range(16):
        e(f"    s_waitcnt vmcnt({15-i})"); e(f"    ds_write_b128 v3, v[{8+4*i}:{11+4*i}] offset:{i*4096}")
    e("    v_readfirstlane_b32 s63, v2")
    e("    s_lshl_b32 s64, s61, 2"); e("    s_add_u32 s64, s64, s63     ; ntile")
    e("    s_waitcnt lgkmcnt(0)"); e("    s_barrier")
    e("    s_cmp_ge_u32 s64, 43"); e(f"    s_cbranch_scc1 L_{nm}_end")
    e("    s_lshl_b32 s65, s64, 15"); e("    v_lshlrev_b32 v5, 4, v1"); e("    v_add_u32 v4, s65, v5     ; W voffset")
    ACC = 64
    for r in range(64): e(f"    v_mov_b32 v{ACC+r}, 0")
    RING = 4
    def wl(s):
        sl = s % RING
        e(f"    buffer_load_dwordx4 v[{8+8*sl}:{11+8*sl}], v4, s[8:11], 0 offen offset:{(s%4)*1024}")
        e(f"    buffer_load_dwordx4 v[{12+8*sl}:{15+8*sl}], v4, s[12:15], 0 offen offset:{(s%4)*1024}")
        if s % 4 == 3: e("    v_add_u32 v4, 0x1000, v4")
    for s in range(RING): wl(s)
    for s in range(32):
        sl = s % RING
        e(f"    ds_read_b128 v[40:43], v5 offset:{s*1024}")
        e(f"    ds_read_b128 v[44:47], v5 offset:{32768+s*1024}")
        outstanding = 2 * (min(32, s + RING) - s)
        e(f"    s_waitcnt vmcnt({outstanding-2}) lgkmcnt(0)")
        e(f"    v_mfma_f32_32x32x16_bf16 v[64:79], v[{8+8*sl}:{11+8*sl}], v[40:43], v[64:79]")
        e(f"    v_mfma_f32_32x32x16_bf16 v[80:95], v[{8+8*sl}:{11+8*sl}], v[44:47], v[80:95]")
        e(f"    v_mfma_f32_32x32x16_bf16 v[96:111], v[{12+8*sl}:{15+8*sl}], v[40:43], v[96:111]")
        e(f"    v_mfma_f32_32x32x16_bf16 v[112:127], v[{12+8*sl}:{15+8*sl}], v[44:47], v[112:127]")
        if s + RING < 32: wl(s + RING)
    e("    s_nop 15")
    e("    s_lshl_b32 s65, s60, 1"); e("    s_mul_i32 s65, s65, 86"); e("    s_lshl_b32 s66, s64, 1"); e("    s_add_u32 s65, s65, s66"); e("    s_lshl_b32 s65, s65, 10")
    e("    v_add_u32 v4, s65, v5")
    e("    s_mov_b32 s66, 0xbfb8aa3b")
    for mi in range(2):
        for sp in range(2):
            for pr in range(4):
                g0 = ACC + 16*mi + 8*sp + 2*pr; u0 = g0 + 32
                e(f"    v_cvt_pk_bf16_f32 v40, v{g0}, v{g0+1}"); e(f"    v_cvt_pk_bf16_f32 v41, v{u0}, v{u0+1}")
                e("    v_lshlrev_b32 v42, 16, v40"); e("    v_and_b32 v43, 0xffff0000, v40")
                e("    v_mul_f32 v44, s66, v42"); e("    v_mul_f32 v45, s66, v43")
                e("    v_exp_f32 v44, v44"); e("    v_exp_f32 v45, v45"); e("    s_nop 0")
                e("    v_add_f32 v44, 1.0, v44"); e("    v_add_f32 v45, 1.0, v45")
                e("    v_rcp_f32 v44, v44"); e("    v_rcp_f32 v45, v45"); e("    s_nop 0")
                e("    v_mul_f32 v42, v42, v44"); e("    v_mul_f32 v43, v43, v45")
                e("    v_cvt_pk_bf16_f32 v40, v42, v43")
                e("    v_lshlrev_b32 v42, 16, v40"); e("    v_and_b32 v43, 0xffff0000, v40")
                e("    v_lshlrev_b32 v44, 16, v41"); e("    v_and_b32 v45, 0xffff0000, v41")
                e("    v_mul_f32 v42, v42, v44"); e("    v_mul_f32 v43, v43, v45")
                e(f"    v_cvt_pk_bf16_f32 v{48+pr}, v42, v43")
            e(f"    buffer_store_dwordx4 v[48:51], v4, s[16:19], 0 offen offset:{sp*1024}")
            e("    s_nop 1")
        if mi == 0: e("    v_add_u32 v4, 88064, v4")
    e(f"L_{nm}_end:")
    e("    s_endpgm")
    kdesc(nm, 128)
    return nm

def kg2(nm, res_ws, final):
    kstart(nm)
    e("    s_load_dwordx2 s[40:41], s[0:1], 80")
    e("    s_load_dwordx2 s[58:59], s[0:1], 96")
    e("    s_cmp_ge_u32 s2, 256"); e(f"    s_cbranch_scc1 L_{nm}_end")
    e("    v_and_b32 v1, 63, v0"); e("    v_lshrrev_b32 v2, 6, v0")
    e("    s_waitcnt lgkmcnt(0)")
    srd(4, 58, 1409024, WS_WD); srd(8, 58, 64*86*1024, WS_H); srd(12, 58, 2097152, res_ws)
    if final: srd(16, 40, 2097152)
    else: srd(16, 58, 2097152, WS_X2)
    e("    v_readfirstlane_b32 s63, v2")
    e("    s_and_b32 s60, s2, 31"); e("    s_lshl_b32 s60, s60, 1"); e("    s_and_b32 s64, s63, 1"); e("    s_add_u32 s60, s60, s64   ; mtile")
    e("    s_lshr_b32 s61, s2, 5"); e("    s_lshl_b32 s61, s61, 1"); e("    s_lshr_b32 s64, s63, 1"); e("    s_add_u32 s61, s61, s64   ; ntile")
    e("    v_lshlrev_b32 v5, 4, v1")
    e("    s_mul_i32 s64, s61, 88064"); e("    v_add_u32 v3, s64, v5")
    e("    s_mul_i32 s64, s60, 88064"); e("    v_add_u32 v4, s64, v5")
    for r in range(16): e(f"    v_mov_b32 v{64+r}, 0")
    RING = 6
    def ld(s):
        sl = s % RING
        e(f"    buffer_load_dwordx4 v[{8+8*sl}:{11+8*sl}], v3, s[4:7], 0 offen offset:{(s%4)*1024}")
        e(f"    buffer_load_dwordx4 v[{12+8*sl}:{15+8*sl}], v4, s[8:11], 0 offen offset:{(s%4)*1024}")
        if s % 4 == 3: e("    v_add_u32 v3, 0x1000, v3"); e("    v_add_u32 v4, 0x1000, v4")
    for s in range(RING): ld(s)
    for s in range(86):
        sl = s % RING
        outstanding = 2 * (min(86, s + RING) - s)
        e(f"    s_waitcnt vmcnt({outstanding-2})")
        e(f"    v_mfma_f32_32x32x16_bf16 v[64:79], v[{8+8*sl}:{11+8*sl}], v[{12+8*sl}:{15+8*sl}], v[64:79]")
        if s + RING < 86: ld(s + RING)
    e("    v_and_b32 v6, 31, v1"); e("    s_lshl_b32 s64, s60, 5"); e("    v_add_u32 v6, s64, v6"); e("    v_lshlrev_b32 v6, 10, v6")
    e("    v_lshrrev_b32 v7, 5, v1"); e("    v_lshl_add_u32 v6, v7, 3, v6"); e("    s_lshl_b32 s64, s61, 6"); e("    v_add_u32 v6, s64, v6")
    for q in range(4): e(f"    buffer_load_dwordx2 v[{8+2*q}:{9+2*q}], v6, s[12:15], 0 offen offset:{16*q}")
    e("    s_nop 15"); e("    s_waitcnt vmcnt(0)")
    for q in range(4):
        for h in range(2):
            a = 64 + 4*q + 2*h
            e(f"    v_cvt_pk_bf16_f32 v20, v{a}, v{a+1}")
            e("    v_lshlrev_b32 v21, 16, v20"); e("    v_and_b32 v22, 0xffff0000, v20")
            e(f"    v_lshlrev_b32 v23, 16, v{8+2*q+h}"); e(f"    v_and_b32 v24, 0xffff0000, v{8+2*q+h}")
            e("    v_add_f32 v21, v21, v23"); e("    v_add_f32 v22, v22, v24")
            e(f"    v_cvt_pk_bf16_f32 v{26+h}, v21, v22")
        e(f"    buffer_store_dwordx2 v[26:27], v6, s[16:19], 0 offen offset:{16*q}")
        e("    s_nop 1")
    e(f"L_{nm}_end:")
    e("    s_endpgm")
    kdesc(nm, 80)
    return nm

hdr = open('cdna_kernels/' + NAME + '.s.ref').read().split('\n')
hdr = [l for l in hdr if l.startswith(';') and '@launch' not in l]
body_start = len(out)
k0(); kln("ln1_kernel", None); kln("ln2_kernel", WS_X2); kg1("g1_kernel"); kg2("g2a_kernel", WS_X1, False); kg2("g2b_kernel", WS_X3, True)
L = hdr + [
 f"; @launch kernel=conv_kernel grid=(256,1,1) block=(256,1,1) lds={LDS0}",
 "; @launch kernel=ln1_kernel grid=(1288,1,1) block=(256,1,1) lds=8192",
 "; @launch kernel=g1_kernel grid=(352,1,1) block=(256,1,1) lds=65536",
 "; @launch kernel=g2a_kernel grid=(256,1,1) block=(256,1,1) lds=0",
 "; @launch kernel=ln2_kernel grid=(256,1,1) block=(256,1,1) lds=8192",
 "; @launch kernel=g1_kernel grid=(352,1,1) block=(256,1,1) lds=65536",
 "; @launch kernel=g2b_kernel grid=(256,1,1) block=(256,1,1) lds=0",
 '.amdgcn_target "amdgcn-amd-amdhsa--gfx950"', ".text"] + out + ['.section .rodata,"a"'] + descs
open('cdna_kernels/' + NAME + '.s', 'w').write('\n'.join(L) + '\n')
```
